```python
import torch

def _softmax(x, axis=-1):
    return torch.softmax(x, dim=axis)

def _gelu(x):
    return torch.nn.functional.gelu(x, approximate='tanh')

def _silu(x):
    return torch.nn.functional.silu(x)

def _sigmoid(x):
    return torch.sigmoid(x)

def _layernorm(x, axis=-1, eps=1e-05):
    m = x.mean(dim=axis, keepdim=True)
    v = x.var(dim=axis, keepdim=True, unbiased=False)
    return (x - m) / torch.sqrt(v + eps)

def _scatter_add(tgt, idx, src, axis=0):
    return tgt.clone().index_add_(axis, idx, src)

def _segment_sum(src, seg, n):
    out = torch.zeros((n,) + src.shape[1:], dtype=src.dtype)
    return out.index_add_(0, seg, src)

def _pad(x, pw):
    flat = tuple((v for pair in reversed(pw) for v in pair))
    return torch.nn.functional.pad(x, flat)
kernel_name = 'standalone__conformer_conv_module__speech'

def setup_inputs():

    _w = lambda a: (lambda t: t.to(torch.bfloat16) if t.is_floating_point() else t)(torch.as_tensor(a))
    B, T, D, K = (2, 4000, 512, 31)
    return {'x': _w((lambda *s: torch.randn(*s, dtype=torch.bfloat16) * 0.2)(B, T, D)), 'w_pw1': _w((lambda *s: torch.randn(*s, dtype=torch.bfloat16) * 0.2)(D, 2 * D)), 'dw': _w((lambda *s: torch.randn(*s, dtype=torch.bfloat16) * 0.2)(K, D)), 'w_pw2': _w((lambda *s: torch.randn(*s, dtype=torch.bfloat16) * 0.05)(D, D))}

def reference(x, w_pw1, dw, w_pw2):
    B, T, D = x.shape
    K = dw.shape[0]
    h = x @ w_pw1
    a, b = (h[..., :D].clone(), h[..., D:].clone())
    h = a * _sigmoid(b)
    pad = K // 2
    hp = _pad(h, ((0, 0), (pad, pad), (0, 0)))
    out = torch.zeros_like(h)
    for i in range(K):
        out = out + hp[:, i:i + T, :] * dw[i][None, None, :]
    return _silu(out) @ w_pw2
```

```python
import sys
STAMPS = int(sys.argv[2]) if len(sys.argv) > 2 else 0
NAME = "standalone__conformer_conv_module__speech"

class Asm:
    def __init__(self):
        self.lines = []
    def __call__(self, s):
        self.lines.append("    " + s)
    def label(self, l):
        self.lines.append(l + ":")
    def raw(self, s):
        self.lines.append(s)
    def text(self):
        return "\n".join(self.lines) + "\n"

def vr(b, n=1):
    return f"v{b}" if n == 1 else f"v[{b}:{b+n-1}]"
def ar(b, n=1):
    return f"a{b}" if n == 1 else f"a[{b}:{b+n-1}]"
def sr(b, n=1):
    return f"s{b}" if n == 1 else f"s[{b}:{b+n-1}]"

def interleave(main, fill, first=0, last=None):
    n = len(main)
    if last is None: last = n
    out = []
    slots = last - first
    nf = len(fill)
    pos = [first + (i * slots) // nf for i in range(nf)] if nf else []
    fi = 0
    for i, m in enumerate(main):
        out.append(m)
        while fi < nf and pos[fi] == i:
            out.extend(fill[fi]); fi += 1
    while fi < nf:
        out.extend(fill[fi]); fi += 1
    return out

STAMP_OFF = 0x4000000
def stamp(A, idx, sbase=60):
    if STAMPS:
        A(f"s_memtime {sr(sbase + 2*idx, 2)}")

def stamps_out(A, n, wgreg, wsp, kidx, sbase=60):
    if not STAMPS: return
    A("s_waitcnt lgkmcnt(0) vmcnt(0)")
    A(f"s_memtime {sr(sbase + 2*(n-1), 2)}")
    A("s_waitcnt lgkmcnt(0)")
    lab = f"L_nostamp{kidx}"
    A(f"s_cmp_lg_u32 s4, 0")
    A(f"s_cbranch_scc1 {lab}")
    A(f"s_mul_i32 s5, {wgreg}, {STAMPS*8}")
    A(f"s_add_u32 s5, s5, {STAMP_OFF + kidx*n*8}")
    A(f"v_mov_b32 v250, s5")
    for i in range(n):
        A(f"v_mov_b32 v252, {sr(sbase+2*i)}")
        A(f"v_mov_b32 v253, {sr(sbase+2*i+1)}")
        A(f"global_store_dwordx2 v250, v[252:253], {wsp} offset:{8*i}")
        A("s_nop 1")
    A.label(lab)

def gen_k1(A):
    XS = 36864; WS_ = 16384; STG = XS + WS_
    HB = 2 * STG; HS = 592
    ACC = 64
    def acc(a, c): return ACC + (a*4 + c)*4
    def fA(P, a): return P*52 + a*4
    def fB(P, c): return P*52 + 36 + c*4
    T1 = 104; T2 = 168
    vXA = 1
    vWA = 10
    vA0, vA1 = 14, 15
    vB = 16
    aA0, aA1 = 20, 21
    aB = 22
    vT = 26
    A.raw(".p2align 8")
    A.label("k1_kernel")
    A("s_cmp_ge_u32 s2, 256")
    A("s_cbranch_scc1 L_k1_end")
    if STAMPS:
        A("s_memrealtime s[60:61]")
        stamp(A, 1)
    A("s_load_dwordx4 s[24:27], s[0:1], 0")
    A("s_load_dwordx2 s[28:29], s[0:1], 16")
    A("s_load_dwordx2 s[30:31], s[0:1], 48")
    A("s_and_b32 s32, s2, 7")
    A("s_lshr_b32 s33, s2, 3")
    A("s_lshr_b32 s34, s33, 3")
    A("s_lshl_b32 s35, s32, 2")
    A("s_add_u32 s34, s34, s35")
    A("s_and_b32 s35, s33, 7")
    A("s_lshr_b32 s36, s34, 4")
    A("s_and_b32 s37, s34, 15")
    A("v_lshrrev_b32 v26, 6, v0")
    A("v_and_b32 v27, 63, v0")
    A("s_nop 0")
    A("v_readfirstlane_b32 s4, v26")
    A("v_and_b32 v28, 15, v27")
    A("v_lshrrev_b32 v29, 4, v27")
    A("s_lshr_b32 s38, s4, 1")
    A("s_and_b32 s39, s4, 1")
    A("v_lshrrev_b32 v30, 3, v27")
    A("s_lshl_b32 s40, s4, 3")
    A("v_add_u32 v30, s40, v30")
    A("v_lshrrev_b32 v31, 1, v30")
    A("v_and_b32 v31, 7, v31")
    A("v_and_b32 v32, 7, v27")
    A("v_xor_b32 v31, v31, v32")
    A("s_mul_i32 s41, s37, 250")
    A("s_sub_u32 s41, s41, 16")
    A("v_add_u32 v30, s41, v30")
    A("v_lshlrev_b32 v33, 10, v30")
    A("v_lshl_add_u32 v33, v31, 4, v33")
    for n in range(1, 9):
        A(f"v_add_u32 {vr(vXA+n)}, {n*32768}, v33")
    A("v_cmp_gt_i32 vcc, 0, v30")
    A("v_mov_b32 v34, 0x80000000")
    A("s_nop 1")
    A(f"v_cndmask_b32 {vr(vXA)}, v33, v34, vcc")
    A("s_lshl_b32 s42, s38, 2")
    A("v_or_b32 v30, s42, v29")
    A("v_lshlrev_b32 v30, 1, v30")
    A("v_xor_b32 v30, v30, v28")
    A("v_and_b32 v31, 7, v30")
    A("v_lshlrev_b32 v31, 4, v31")
    A("v_lshrrev_b32 v30, 3, v30")
    A("v_lshlrev_b32 v30, 10, v30")
    A("v_add_u32 v31, v30, v31")
    A("s_lshl_b32 s42, s4, 2")
    A("v_add_u32 v30, s42, v29")
    A("v_lshl_add_u32 v31, v30, 11, v31")
    A("s_lshl_b32 s42, s35, 7")
    A(f"v_add_u32 {vr(vWA)}, s42, v31")
    for m in range(1, 4):
        A(f"v_add_u32 {vr(vWA+m)}, {m*32768}, {vr(vWA)}")
    A("s_waitcnt lgkmcnt(0)")
    A("s_mul_i32 s42, s36, 4096000")
    A("s_add_u32 s8, s24, s42")
    A("s_addc_u32 s9, s25, 0")
    A("s_and_b32 s9, s9, 0xffff")
    A("s_mov_b32 s10, 4096000")
    A("s_mov_b32 s11, 0x20000")
    A("s_mov_b32 s12, s26")
    A("s_and_b32 s13, s27, 0xffff")
    A("s_mov_b32 s14, 1048576")
    A("s_mov_b32 s15, 0x20000")
    A("s_mov_b32 s16, s28")
    A("s_and_b32 s17, s29, 0xffff")
    A("s_mov_b32 s18, 31744")
    A("s_mov_b32 s19, 0x20000")
    A("s_mov_b32 s20, s30")
    A("s_and_b32 s21, s31, 0xffff")
    A("s_mov_b32 s22, 8388608")
    A("s_mov_b32 s23, 0x20000")
    A("s_lshl_b32 s43, s4, 10")
    def dma_groups(sbase, sx, sw):
        g = []
        for m in range(4):
            g.append([f"s_add_u32 m0, {sbase}, {XS + m*4096}", "s_nop 0",
                      f"buffer_load_dwordx4 {vr(vWA+m)}, s[12:15], {sw} offen lds"])
        for n in range(9):
            g.append([f"s_add_u32 m0, {sbase}, {n*4096}", "s_nop 0",
                      f"buffer_load_dwordx4 {vr(vXA+n)}, s[8:11], {sx} offen lds"])
        return g
    for kc in range(3):
        A(f"s_add_u32 s44, s43, {kc*STG}")
        A(f"s_mov_b32 s45, {kc*128}")
        A(f"s_mov_b32 s46, {kc*131072}")
        for g in dma_groups("s44", "s45", "s46"):
            for ins in g: A(ins)
    stamp(A, 2)
    A("v_lshlrev_b32 v30, 3, v29")
    A("v_sub_u32 v30, v30, v28")
    A("v_subrev_u32 v30, 1, v30")
    A("v_lshlrev_b32 v31, 2, v29")
    A("v_sub_u32 v31, v31, v28")
    A("v_add_u32 v31, 31, v31")
    A("s_lshl_b32 s42, s35, 7")
    A("s_lshl_b32 s47, s4, 5")
    A("s_add_u32 s42, s42, s47")
    A("v_mov_b32 v34, 0x80000000")
    R = 64
    for e in range(12):
        if e < 8:
            A(f"v_add_u32 v32, {e}, v30")
        else:
            A(f"v_add_u32 v32, {e-8}, v31")
        A("v_cmp_gt_i32 vcc, 0, v32")
        A("v_lshlrev_b32 v33, 10, v32")
        A("v_add_u32 v33, s42, v33")
        A(f"v_cndmask_b32 {vr(36+e)}, v33, v34, vcc")
    for e in range(12):
        for o in range(2):
            A(f"buffer_load_dwordx4 {vr(R + (e*2+o)*4, 4)}, {vr(36+e)}, s[16:19], 0 offen offset:{16*o}")
    A("v_lshrrev_b32 v30, 1, v28")
    A("v_xor_b32 v30, v30, v29")
    A("v_lshlrev_b32 v30, 4, v30")
    A("v_lshl_add_u32 v30, v28, 7, v30")
    A("s_mul_i32 s42, s38, 18432")
    A(f"v_add_u32 {vr(vA0)}, s42, v30")
    A(f"v_xor_b32 {vr(vA1)}, 64, {vr(vA0)}")
    A("v_lshrrev_b32 v30, 2, v28")
    A("v_and_b32 v31, 1, v29")
    A("v_lshlrev_b32 v31, 2, v31")
    A("v_or_b32 v31, v31, v30")
    A("v_lshl_add_u32 v30, v29, 3, v30")
    A("v_lshlrev_b32 v30, 8, v30")
    A("v_and_b32 v32, 3, v28")
    A("v_lshl_add_u32 v30, v32, 3, v30")
    A("s_lshl_b32 s42, s39, 1")
    A("v_xor_b32 v31, s42, v31")
    for c in range(4):
        x = (c & 1) | ((c >> 1) << 2)
        A(f"v_xor_b32 v32, {x}, v31")
        A(f"v_lshl_add_u32 {vr(vB+c)}, v32, 5, v30")
    A("s_waitcnt vmcnt(0)")
    A("s_mov_b32 s48, 0x05040100")
    A("s_mov_b32 s49, 0x07060302")
    def Rr(e, o, q): return R + (e*2+o)*4 + q
    for ch in range(16):
        o, q, hi = ch >> 3, (ch & 7) >> 1, ch & 1
        sel = "s49" if hi else "s48"
        for m in range(6):
            A(f"v_perm_b32 {vr(50 + m)}, {vr(Rr(2*m+1, o, q))}, {vr(Rr(2*m, o, q))}, {sel}")
        for m in range(6):
            dst = T1 + 4*ch + m if m < 4 else T2 + 2*ch + (m-4)
            A(f"v_accvgpr_write_b32 {ar(dst)}, {vr(50+m)}")
    for r in range(ACC, ACC+144):
        A(f"v_mov_b32 {vr(r)}, 0")
    stamp(A, 3)
    A("s_barrier")
    def frag_reads(P, aA, boff):
        g = []
        for c in range(4):
            for hh in range(2):
                g.append([f"ds_read_b64_tr_b16 {ar(fB(P,c)+2*hh, 2)}, {vr(aB+c)} offset:{XS + boff + hh*1024}"])
        for a in range(9):
            g.append([f"ds_read_b128 {ar(fA(P,a), 4)}, {vr(aA)} offset:{a*2048}"])
        return g
    def mfmas(P):
        m = []
        for a in range(9):
            for c in range(4):
                m.append(f"v_mfma_f32_16x16x32_bf16 {vr(acc(a,c),4)}, {ar(fA(P,a),4)}, {ar(fB(P,c),4)}, {vr(acc(a,c),4)}")
        return m
    def set_addr(sbuf):
        g = [f"v_add_u32 {vr(aA0)}, {sbuf}, {vr(vA0)}", f"v_add_u32 {vr(aA1)}, {sbuf}, {vr(vA1)}"]
        for c in range(4):
            g.append(f"v_add_u32 {vr(aB+c)}, {sbuf}, {vr(vB+c)}")
        return g
    A("s_mov_b32 s50, 0")
    for i in set_addr("s50"): A(i)
    for g in frag_reads(0, aA0, 0):
        for i in g: A(i)
    A("s_mov_b32 s51, 0")
    A("s_mov_b32 s44, s43")
    A(f"s_mov_b32 s45, {3*128}")
    A(f"s_mov_b32 s46, {3*131072}")
    A.raw(".p2align 6")
    A.label("L_k1_loop")
    A("s_waitcnt lgkmcnt(0)")
    body = interleave(mfmas(0), frag_reads(1, aA1, 8192), 0, 26)
    for i in body: A(i)
    A(f"s_add_u32 s50, s50, {STG}")
    A(f"s_cmp_eq_u32 s50, {3*STG}")
    A("s_cselect_b32 s50, 0, s50")
    A("s_cmp_lt_u32 s51, 5")
    A("s_cselect_b32 s45, s45, 0x40000000")
    A("s_waitcnt vmcnt(13) lgkmcnt(0)")
    A("s_barrier")
    for i in set_addr("s50"): A(i)
    fr = frag_reads(0, aA0, 0)
    dm = dma_groups("s44", "s45", "s46")
    fill = []
    for i in range(max(len(fr), len(dm))):
        if i < len(fr): fill.append(fr[i])
        if i < len(dm): fill.append(dm[i])
    body = interleave(mfmas(1), fill, 0, 32)
    for i in body: A(i)
    A(f"s_add_u32 s44, s44, {STG}")
    A(f"s_sub_u32 s52, s44, {3*STG}")
    A(f"s_cmp_ge_u32 s44, {3*STG}")
    A("s_cselect_b32 s44, s52, s44")
    A("s_add_u32 s45, s45, 128")
    A("s_add_u32 s46, s46, 131072")
    A("s_add_u32 s51, s51, 1")
    A("s_cmp_lt_u32 s51, 8")
    A("s_cbranch_scc1 L_k1_loop")
    stamp(A, 4)
    A("s_mov_b32 s53, 0xbfb8aa3b")
    A(f"s_mul_i32 s42, s39, {32*HS}")
    A(f"s_mul_i32 s47, s38, {9*32}")
    A("s_add_u32 s42, s42, s47")
    A(f"s_add_u32 s42, s42, {HB}")
    A(f"s_movk_i32 s47, {HS}")
    A("v_mul_lo_u32 v30, v28, s47")
    A("v_lshl_add_u32 v30, v29, 3, v30")
    A("v_add_u32 v30, s42, v30")
    A("s_nop 7")
    for a in range(9):
        t = 32
        for cc in range(2):
            for r in range(4):
                A(f"v_mul_f32 {vr(t+cc*4+r)}, s53, {vr(acc(a,2+cc)+r)}")
        for x in range(8):
            A(f"v_exp_f32 {vr(t+x)}, {vr(t+x)}")
        for x in range(8):
            A(f"v_add_f32 {vr(t+x)}, 1.0, {vr(t+x)}")
        for x in range(8):
            A(f"v_rcp_f32 {vr(t+x)}, {vr(t+x)}")
        for cc in range(2):
            for r in range(4):
                A(f"v_mul_f32 {vr(t+cc*4+r)}, {vr(acc(a,cc)+r)}, {vr(t+cc*4+r)}")
        p = 48 + (a & 1)*4
        for cc in range(2):
            A(f"v_cvt_pk_bf16_f32 {vr(p+cc*2)}, {vr(t+cc*4)}, {vr(t+cc*4+1)}")
            A(f"v_cvt_pk_bf16_f32 {vr(p+cc*2+1)}, {vr(t+cc*4+2)}, {vr(t+cc*4+3)}")
        for cc in range(2):
            A(f"ds_write_b64 v30, {vr(p+cc*2,2)} offset:{cc*16*HS + a*32}")
    A(f"s_mul_i32 s42, s4, {16*HS}")
    A(f"s_add_u32 s42, s42, {HB}")
    A("v_lshlrev_b32 v31, 5, v28")
    A("v_add_u32 v31, s42, v31")
    A("v_lshl_add_u32 v32, v29, 3, v31")
    A("v_lshl_add_u32 v31, v29, 4, v31")
    A("s_waitcnt lgkmcnt(0)")
    A("s_barrier")
    stamp(A, 5)
    for ch in range(16):
        A(f"ds_read_b128 {ar(4*ch,4)}, v31 offset:{ch*HS}")
        A(f"ds_read_b64 {ar(64+2*ch,2)}, v32 offset:{ch*HS+64}")
    D = 64
    A("s_waitcnt lgkmcnt(0)")
    for ch in range(16):
        A(f"v_mfma_f32_16x16x32_bf16 {vr(D+4*ch,4)}, {ar(4*ch,4)}, {ar(T1+4*ch,4)}, 0")
    for ch in range(16):
        A(f"v_mfma_f32_16x16x16_bf16 {vr(D+4*ch,4)}, {ar(64+2*ch,2)}, {ar(T2+2*ch,2)}, {vr(D+4*ch,4)}")
    A("s_lshl_b32 s42, s35, 3")
    A("s_lshl_b32 s47, s4, 1")
    A("s_add_u32 s42, s42, s47")
    A("s_lshl_b32 s42, s42, 17")
    A("s_lshl_b32 s47, s34, 12")
    A("s_add_u32 s42, s42, s47")
    A("v_lshlrev_b32 v30, 10, v29")
    A("v_lshl_add_u32 v30, v28, 4, v30")
    A("v_add_u32 v30, s42, v30")
    A("s_mov_b32 s47, 131072")
    A("s_nop 7")
    PK = 128
    for r in range(4):
        for hh in range(2):
            t = 32
            for x in range(8):
                A(f"v_mul_f32 {vr(t+x)}, s53, {vr(D+4*(8*hh+x)+r)}")
            for x in range(8):
                A(f"v_exp_f32 {vr(t+x)}, {vr(t+x)}")
            for x in range(8):
                A(f"v_add_f32 {vr(t+x)}, 1.0, {vr(t+x)}")
            for x in range(8):
                A(f"v_rcp_f32 {vr(t+x)}, {vr(t+x)}")
            for x in range(8):
                A(f"v_mul_f32 {vr(t+x)}, {vr(D+4*(8*hh+x)+r)}, {vr(t+x)}")
            p = PK + (r*2+hh)*4
            for x in range(4):
                A(f"v_cvt_pk_bf16_f32 {vr(p+x)}, {vr(t+2*x)}, {vr(t+2*x+1)}")
            so = "s47" if hh else "0"
            A(f"buffer_store_dwordx4 {vr(p,4)}, v30, s[20:23], {so} offen offset:{r*256}")
    stamp(A, 6)
    stamps_out(A, 8, "s2", "s[30:31]", 0)
    A.label("L_k1_end")
    A("s_endpgm")

def gen_k2(A):
    NB = 5
    SS = 16384; STG = 32768
    ACC = 64
    def acc(a, c): return ACC + (a*4 + c)*4
    def fS(P, a): return P*32 + a*4
    def fW(P, c): return P*32 + 16 + c*4
    vSA = 1
    vWA = 5
    vS0 = 9
    vB = 10
    aS0 = 14
    aB = 15
    A.raw(".p2align 8")
    A.label("k2_kernel")
    A("s_cmp_ge_u32 s2, 256")
    A("s_cbranch_scc1 L_k2_end")
    if STAMPS:
        A("s_memrealtime s[60:61]")
        stamp(A, 1)
    A("s_load_dwordx4 s[24:27], s[0:1], 24")
    A("s_load_dwordx2 s[30:31], s[0:1], 48")
    A("s_and_b32 s32, s2, 7")
    A("s_lshr_b32 s33, s2, 3")
    A("s_lshr_b32 s34, s33, 3")
    A("s_lshl_b32 s35, s32, 2")
    A("s_add_u32 s34, s34, s35")
    A("s_and_b32 s35, s33, 3")
    A("s_lshr_b32 s40, s33, 2")
    A("s_and_b32 s40, s40, 1")
    A("s_lshr_b32 s36, s34, 4")
    A("s_and_b32 s37, s34, 15")
    A("v_lshrrev_b32 v26, 6, v0")
    A("v_and_b32 v27, 63, v0")
    A("s_nop 0")
    A("v_readfirstlane_b32 s4, v26")
    A("v_and_b32 v28, 15, v27")
    A("v_lshrrev_b32 v29, 4, v27")
    A("s_lshr_b32 s38, s4, 1")
    A("s_and_b32 s39, s4, 1")
    A("s_lshl_b32 s42, s34, 8")
    A("s_lshl_b32 s41, s40, 7")
    A("s_add_u32 s42, s42, s41")
    A("s_lshl_b32 s41, s39, 6")
    A("s_add_u32 s42, s42, s41")
    A("s_lshl_b32 s42, s42, 4")
    A("s_lshl_b32 s41, s38, 17")
    A("s_add_u32 s42, s42, s41")
    A("v_lshlrev_b32 v30, 4, v27")
    A(f"v_add_u32 {vr(vSA)}, s42, v30")
    for m in range(1, 4):
        A(f"v_add_u32 {vr(vSA+m)}, {m*262144}, {vr(vSA)}")
    A("s_lshl_b32 s42, s38, 2")
    A("v_or_b32 v30, s42, v29")
    A("v_lshlrev_b32 v30, 1, v30")
    A("v_xor_b32 v30, v30, v28")
    A("v_lshlrev_b32 v31, 4, v30")
    A("s_lshl_b32 s42, s4, 2")
    A("v_add_u32 v30, s42, v29")
    A("v_lshl_add_u32 v31, v30, 10, v31")
    A("s_lshl_b32 s42, s35, 8")
    A(f"v_add_u32 {vr(vWA)}, s42, v31")
    for m in range(1, 4):
        A(f"v_add_u32 {vr(vWA+m)}, {m*16384}, {vr(vWA)}")
    A("s_waitcnt lgkmcnt(0)")
    A("s_mov_b32 s8, s30")
    A("s_and_b32 s9, s31, 0xffff")
    A("s_mov_b32 s10, 8388608")
    A("s_mov_b32 s11, 0x20000")
    A("s_mov_b32 s12, s24")
    A("s_and_b32 s13, s25, 0xffff")
    A("s_mov_b32 s14, 524288")
    A("s_mov_b32 s15, 0x20000")
    A("s_mov_b32 s16, s26")
    A("s_and_b32 s17, s27, 0xffff")
    A("s_mov_b32 s18, 8192000")
    A("s_mov_b32 s19, 0x20000")
    A("s_lshl_b32 s43, s4, 10")
    def dma_groups(sbase, sx, sw):
        g = []
        for m in range(4):
            g.append([f"s_add_u32 m0, {sbase}, {SS + m*4096}", "s_nop 0",
                      f"buffer_load_dwordx4 {vr(vWA+m)}, s[12:15], {sw} offen lds"])
            g.append([f"s_add_u32 m0, {sbase}, {m*4096}", "s_nop 0",
                      f"buffer_load_dwordx4 {vr(vSA+m)}, s[8:11], {sx} offen lds"])
        return g
    for kc in range(NB):
        A(f"s_add_u32 s44, s43, {kc*STG}")
        A(f"s_mov_b32 s45, {kc*1048576}")
        A(f"s_mov_b32 s46, {kc*65536}")
        for g in dma_groups("s44", "s45", "s46"):
            for ins in g: A(ins)
    stamp(A, 2)
    A("v_lshlrev_b32 v30, 11, v29")
    A("v_lshl_add_u32 v30, v28, 4, v30")
    A("s_lshl_b32 s42, s38, 10")
    A(f"v_add_u32 {vr(vS0)}, s42, v30")
    A("v_lshrrev_b32 v30, 2, v28")
    A("v_and_b32 v31, 1, v29")
    A("v_lshlrev_b32 v31, 2, v31")
    A("v_or_b32 v31, v31, v30")
    A("v_lshl_add_u32 v30, v29, 3, v30")
    A("v_lshlrev_b32 v30, 8, v30")
    A("v_and_b32 v32, 3, v28")
    A("v_lshl_add_u32 v30, v32, 3, v30")
    A("s_lshl_b32 s42, s39, 2")
    A("v_xor_b32 v31, s42, v31")
    for c in range(4):
        A(f"v_xor_b32 v32, {c}, v31")
        A(f"v_lshl_add_u32 {vr(vB+c)}, v32, 5, v30")
    for r in range(ACC, ACC+64):
        A(f"v_mov_b32 {vr(r)}, 0")
    A(f"s_waitcnt vmcnt({(NB-1)*8})")
    A("s_barrier")
    stamp(A, 3)
    def frag_reads(P, ks):
        g = []
        for c in range(4):
            for hh in range(2):
                g.append([f"ds_read_b64_tr_b16 {ar(fW(P,c)+2*hh, 2)}, {vr(aB+c)} offset:{SS + ks*8192 + hh*1024}"])
            g.append([f"ds_read_b128 {ar(fS(P,c), 4)}, {vr(aS0)} offset:{ks*8192 + c*256}"])
        return g
    def mfmas(P):
        m = []
        for a in range(4):
            for c in range(4):
                m.append(f"v_mfma_f32_16x16x32_bf16 {vr(acc(a,c),4)}, {ar(fW(P,c),4)}, {ar(fS(P,a),4)}, {vr(acc(a,c),4)}")
        return m
    def set_addr(sbuf):
        g = [f"v_add_u32 {vr(aS0)}, {sbuf}, {vr(vS0)}"]
        for c in range(4):
            g.append(f"v_add_u32 {vr(aB+c)}, {sbuf}, {vr(vB+c)}")
        return g
    A("s_mov_b32 s50, 0")
    for i in set_addr("s50"): A(i)
    for g in frag_reads(0, 0):
        for i in g: A(i)
    A("s_mov_b32 s51, 0")
    A("s_mov_b32 s44, s43")
    A(f"s_mov_b32 s45, {NB*1048576}")
    A(f"s_mov_b32 s46, {NB*65536}")
    A.raw(".p2align 6")
    A.label("L_k2_loop")
    A("s_waitcnt lgkmcnt(0)")
    body = interleave(mfmas(0), frag_reads(1, 1), 0, 12)
    for i in body: A(i)
    A(f"s_add_u32 s50, s50, {STG}")
    A(f"s_cmp_eq_u32 s50, {NB*STG}")
    A("s_cselect_b32 s50, 0, s50")
    A(f"s_waitcnt vmcnt({(NB-2)*8}) lgkmcnt(0)")
    A("s_barrier")
    for i in set_addr("s50"): A(i)
    fr = frag_reads(0, 0)
    dm = dma_groups("s44", "s45", "s46")
    fill = fr + dm
    body = interleave(mfmas(1), fill, 0, 16)
    for i in body: A(i)
    A(f"s_add_u32 s44, s44, {STG}")
    A(f"s_sub_u32 s52, s44, {NB*STG}")
    A(f"s_cmp_ge_u32 s44, {NB*STG}")
    A("s_cselect_b32 s44, s52, s44")
    A("s_add_u32 s45, s45, 1048576")
    A("s_add_u32 s46, s46, 65536")
    A("s_add_u32 s51, s51, 1")
    A("s_cmp_lt_u32 s51, 8")
    A("s_cbranch_scc1 L_k2_loop")
    stamp(A, 4)
    A("s_lshl_b32 s42, s40, 7")
    A("s_lshl_b32 s41, s38, 6")
    A("s_add_u32 s42, s42, s41")
    A("v_add_u32 v30, s42, v28")
    A("s_mul_i32 s41, s36, 4000")
    A("s_mul_i32 s47, s37, 250")
    A("s_add_u32 s41, s41, s47")
    A("v_and_b32 v31, 1, v29")
    A("v_lshlrev_b32 v31, 5, v31")
    A("v_lshrrev_b32 v32, 1, v29")
    A("v_lshl_add_u32 v31, v32, 4, v31")
    A("s_lshl_b32 s47, s35, 8")
    A("s_lshl_b32 s48, s39, 7")
    A("s_add_u32 s47, s47, s48")
    A("v_add_u32 v31, s47, v31")
    A("v_mov_b32 v34, 0x80000000")
    A("s_movk_i32 s48, 250")
    for a in range(4):
        A(f"v_add_u32 v32, {16*a}, v30")
        A("v_cmp_gt_u32 vcc, s48, v32")
        A("v_add_u32 v32, s41, v32")
        A("v_lshl_add_u32 v32, v32, 10, v31")
        A(f"v_cndmask_b32 {vr(36+a)}, v34, v32, vcc")
    PK = 128
    for a in range(4):
        for pr in range(2):
            p = PK + (a*2+pr)*4
            for t in range(2):
                d = acc(a, 2*pr+t)
                A(f"v_cvt_pk_bf16_f32 {vr(p+2*t)}, {vr(d)}, {vr(d+1)}")
                A(f"v_cvt_pk_bf16_f32 {vr(p+2*t+1)}, {vr(d+2)}, {vr(d+3)}")
            A("s_nop 1")
            A(f"v_permlane16_swap_b32 {vr(p)}, {vr(p+2)}")
            A(f"v_permlane16_swap_b32 {vr(p+1)}, {vr(p+3)}")
            A(f"buffer_store_dwordx4 {vr(p,4)}, {vr(36+a)}, s[16:19], 0 offen offset:{64*pr}")
    stamp(A, 5)
    stamp(A, 6)
    stamps_out(A, 8, "s2", "s[30:31]", 1)
    A.label("L_k2_end")
    A("s_endpgm")

def kd(name, vgpr, accum, sgpr=96):
    return f""".amdhsa_kernel {name}
  .amdhsa_next_free_vgpr {vgpr}
  .amdhsa_next_free_sgpr {sgpr}
  .amdhsa_accum_offset {accum}
  .amdhsa_group_segment_fixed_size 0
  .amdhsa_kernarg_size 56
  .amdhsa_user_sgpr_count 2
  .amdhsa_user_sgpr_kernarg_segment_ptr 1
  .amdhsa_system_sgpr_workgroup_id_x 1
.end_amdhsa_kernel
"""

A = Asm()
A.raw("; @launch kernel=k1_kernel grid=(256,1,1) block=(256,1,1) lds=159744")
A.raw("; @launch kernel=k2_kernel grid=(256,1,1) block=(256,1,1) lds=163840")
A.raw('.amdgcn_target "amdgcn-amd-amdhsa--gfx950"')
A.raw(".text")
A.raw(".globl k1_kernel\n.type k1_kernel,@function")
gen_k1(A)
A.raw(".globl k2_kernel\n.type k2_kernel,@function")
gen_k2(A)
A.raw('.section .rodata,"a"')
A.raw(".p2align 6")
A.raw(kd("k1_kernel", 512, 256))
A.raw(".p2align 6")
A.raw(kd("k2_kernel", 512, 256))
open(sys.argv[1], "w").write(A.text())
```

```python
import sys
STAMPS = int(sys.argv[2]) if len(sys.argv) > 2 else 0
NAME = "standalone__conformer_conv_module__speech"

class Asm:
    def __init__(self):
        self.lines = []
    def __call__(self, s):
        self.lines.append("    " + s)
    def label(self, l):
        self.lines.append(l + ":")
    def raw(self, s):
        self.lines.append(s)
    def text(self):
        return "\n".join(self.lines) + "\n"

def vr(b, n=1):
    return f"v{b}" if n == 1 else f"v[{b}:{b+n-1}]"
def ar(b, n=1):
    return f"a{b}" if n == 1 else f"a[{b}:{b+n-1}]"
def sr(b, n=1):
    return f"s{b}" if n == 1 else f"s[{b}:{b+n-1}]"

def interleave(main, fill, first=0, last=None):
    n = len(main)
    if last is None: last = n
    out = []
    slots = last - first
    nf = len(fill)
    pos = [first + (i * slots) // nf for i in range(nf)] if nf else []
    fi = 0
    for i, m in enumerate(main):
        out.append(m)
        while fi < nf and pos[fi] == i:
            out.extend(fill[fi]); fi += 1
    while fi < nf:
        out.extend(fill[fi]); fi += 1
    return out

STAMP_OFF = 0x4000000
def stamp(A, idx, sbase=60):
    if STAMPS:
        A(f"s_memtime {sr(sbase + 2*idx, 2)}")

def stamps_dbg(A, n, sbase=60):
    A("s_waitcnt lgkmcnt(0) vmcnt(0)")
    A(f"s_memtime {sr(sbase + 2*(n-1), 2)}")
    A("s_load_dwordx2 s[28:29], s[0:1], 40")
    A("s_waitcnt lgkmcnt(0)")
    A("s_cmp_lg_u32 s4, 0")
    A("s_cbranch_scc1 L_nodbg")
    A("s_mov_b32 s5, 0")
    A("s_cmp_eq_u32 s2, 0")
    A("s_cbranch_scc1 L_dodbg")
    A("s_mov_b32 s5, 32")
    A("s_cmp_eq_u32 s2, 131")
    A("s_cbranch_scc0 L_nodbg")
    A.label("L_dodbg")
    A("v_mov_b32 v250, s5")
    for i in range(2, n):
        A(f"s_sub_u32 s6, {sr(sbase+2*i)}, {sr(sbase+2)}")
        A("v_mov_b32 v252, s6")
        A(f"global_store_dword v250, v252, s[28:29] offset:{4*(i-2)}")
        A("s_nop 1")
    A.label("L_nodbg")

def stamps_out(A, n, wgreg, wsp, kidx, sbase=60):
    if STAMPS == 99:
        if kidx == 0: stamps_dbg(A, n)
        return
    if not STAMPS: return
    A("s_waitcnt lgkmcnt(0) vmcnt(0)")
    A(f"s_memtime {sr(sbase + 2*(n-1), 2)}")
    A("s_waitcnt lgkmcnt(0)")
    lab = f"L_nostamp{kidx}"
    A(f"s_cmp_lg_u32 s4, 0")
    A(f"s_cbranch_scc1 {lab}")
    A(f"s_mul_i32 s5, {wgreg}, {STAMPS*8}")
    A(f"s_add_u32 s5, s5, {STAMP_OFF + kidx*n*8}")
    A(f"v_mov_b32 v250, s5")
    for i in range(n):
        A(f"v_mov_b32 v252, {sr(sbase+2*i)}")
        A(f"v_mov_b32 v253, {sr(sbase+2*i+1)}")
        A(f"global_store_dwordx2 v250, v[252:253], {wsp} offset:{8*i}")
        A("s_nop 1")
    A.label(lab)

def gen_k1(A):
    XS = 36864; WS_ = 16384; STG = XS + WS_
    HB = 2 * STG; HS = 592
    ACC = 64
    def acc(a, c): return ACC + (a*4 + c)*4
    def fA(P, a): return P*52 + a*4
    def fB(P, c): return P*52 + 36 + c*4
    T1 = 104; T2 = 168
    vXA = 1
    vWA = 10
    vA0, vA1 = 14, 15
    vB = 16
    aA0, aA1 = 20, 21
    aB = 22
    vT = 26
    A.raw(".p2align 8")
    A.label("k1_kernel")
    A("s_cmp_ge_u32 s2, 256")
    A("s_cbranch_scc1 L_k1_end")
    if STAMPS:
        A("s_memrealtime s[60:61]")
        stamp(A, 1)
    A("s_load_dwordx4 s[24:27], s[0:1], 0")
    A("s_load_dwordx2 s[28:29], s[0:1], 16")
    A("s_load_dwordx2 s[30:31], s[0:1], 48")
    A("s_and_b32 s32, s2, 7")
    A("s_lshr_b32 s33, s2, 3")
    A("s_lshr_b32 s34, s33, 3")
    A("s_lshl_b32 s35, s32, 2")
    A("s_add_u32 s34, s34, s35")
    A("s_and_b32 s35, s33, 7")
    A("s_lshr_b32 s36, s34, 4")
    A("s_and_b32 s37, s34, 15")
    A("v_lshrrev_b32 v26, 6, v0")
    A("v_and_b32 v27, 63, v0")
    A("s_nop 0")
    A("v_readfirstlane_b32 s4, v26")
    A("v_and_b32 v28, 15, v27")
    A("v_lshrrev_b32 v29, 4, v27")
    A("s_lshr_b32 s38, s4, 1")
    A("s_and_b32 s39, s4, 1")
    A("v_lshrrev_b32 v30, 3, v27")
    A("s_lshl_b32 s40, s4, 3")
    A("v_add_u32 v30, s40, v30")
    A("v_lshrrev_b32 v31, 1, v30")
    A("v_and_b32 v31, 7, v31")
    A("v_and_b32 v32, 7, v27")
    A("v_xor_b32 v31, v31, v32")
    A("s_mul_i32 s41, s37, 250")
    A("s_sub_u32 s41, s41, 16")
    A("v_add_u32 v30, s41, v30")
    A("v_lshlrev_b32 v33, 10, v30")
    A("v_lshl_add_u32 v33, v31, 4, v33")
    for n in range(1, 9):
        A(f"v_add_u32 {vr(vXA+n)}, {n*32768}, v33")
    A("v_cmp_gt_i32 vcc, 0, v30")
    A("v_mov_b32 v34, 0x80000000")
    A("s_nop 1")
    A(f"v_cndmask_b32 {vr(vXA)}, v33, v34, vcc")
    A("s_lshl_b32 s42, s38, 2")
    A("v_or_b32 v30, s42, v29")
    A("v_lshlrev_b32 v30, 1, v30")
    A("v_xor_b32 v30, v30, v28")
    A("v_and_b32 v31, 7, v30")
    A("v_lshlrev_b32 v31, 4, v31")
    A("v_lshrrev_b32 v30, 3, v30")
    A("v_lshlrev_b32 v30, 10, v30")
    A("v_add_u32 v31, v30, v31")
    A("s_lshl_b32 s42, s4, 2")
    A("v_add_u32 v30, s42, v29")
    A("v_lshl_add_u32 v31, v30, 11, v31")
    A("s_lshl_b32 s42, s35, 7")
    A(f"v_add_u32 {vr(vWA)}, s42, v31")
    for m in range(1, 4):
        A(f"v_add_u32 {vr(vWA+m)}, {m*32768}, {vr(vWA)}")
    A("s_waitcnt lgkmcnt(0)")
    A("s_mul_i32 s42, s36, 4096000")
    A("s_add_u32 s8, s24, s42")
    A("s_addc_u32 s9, s25, 0")
    A("s_and_b32 s9, s9, 0xffff")
    A("s_mov_b32 s10, 4096000")
    A("s_mov_b32 s11, 0x20000")
    A("s_mov_b32 s12, s26")
    A("s_and_b32 s13, s27, 0xffff")
    A("s_mov_b32 s14, 1048576")
    A("s_mov_b32 s15, 0x20000")
    A("s_mov_b32 s16, s28")
    A("s_and_b32 s17, s29, 0xffff")
    A("s_mov_b32 s18, 31744")
    A("s_mov_b32 s19, 0x20000")
    A("s_mov_b32 s20, s30")
    A("s_and_b32 s21, s31, 0xffff")
    A("s_mov_b32 s22, 8388608")
    A("s_mov_b32 s23, 0x20000")
    A("s_lshl_b32 s43, s4, 10")
    def dma_groups(sbase, sx, sw):
        g = []
        for m in range(4):
            g.append([f"s_add_u32 m0, {sbase}, {XS + m*4096}", "s_nop 0",
                      f"buffer_load_dwordx4 {vr(vWA+m)}, s[12:15], {sw} offen lds"])
        for n in range(9):
            g.append([f"s_add_u32 m0, {sbase}, {n*4096}", "s_nop 0",
                      f"buffer_load_dwordx4 {vr(vXA+n)}, s[8:11], {sx} offen lds"])
        return g
    for kc in range(3):
        A(f"s_add_u32 s44, s43, {kc*STG}")
        A(f"s_mov_b32 s45, {kc*128}")
        A(f"s_mov_b32 s46, {kc*131072}")
        for g in dma_groups("s44", "s45", "s46"):
            for ins in g: A(ins)
    stamp(A, 2)
    A("v_lshlrev_b32 v30, 3, v29")
    A("v_sub_u32 v30, v30, v28")
    A("v_subrev_u32 v30, 1, v30")
    A("v_lshlrev_b32 v31, 2, v29")
    A("v_sub_u32 v31, v31, v28")
    A("v_add_u32 v31, 31, v31")
    A("s_lshl_b32 s42, s35, 7")
    A("s_lshl_b32 s47, s4, 5")
    A("s_add_u32 s42, s42, s47")
    A("v_mov_b32 v34, 0x80000000")
    R = 64
    for e in range(12):
        if e < 8:
            A(f"v_add_u32 v32, {e}, v30")
        else:
            A(f"v_add_u32 v32, {e-8}, v31")
        A("v_cmp_gt_i32 vcc, 0, v32")
        A("v_lshlrev_b32 v33, 10, v32")
        A("v_add_u32 v33, s42, v33")
        A(f"v_cndmask_b32 {vr(36+e)}, v33, v34, vcc")
    for e in range(12):
        for o in range(2):
            A(f"buffer_load_dwordx4 {vr(R + (e*2+o)*4, 4)}, {vr(36+e)}, s[16:19], 0 offen offset:{16*o}")
    A("v_lshrrev_b32 v30, 1, v28")
    A("v_xor_b32 v30, v30, v29")
    A("v_lshlrev_b32 v30, 4, v30")
    A("v_lshl_add_u32 v30, v28, 7, v30")
    A("s_mul_i32 s42, s38, 18432")
    A(f"v_add_u32 {vr(vA0)}, s42, v30")
    A(f"v_xor_b32 {vr(vA1)}, 64, {vr(vA0)}")
    A("v_lshrrev_b32 v30, 2, v28")
    A("v_and_b32 v31, 1, v29")
    A("v_lshlrev_b32 v31, 2, v31")
    A("v_or_b32 v31, v31, v30")
    A("v_lshl_add_u32 v30, v29, 3, v30")
    A("v_lshlrev_b32 v30, 8, v30")
    A("v_and_b32 v32, 3, v28")
    A("v_lshl_add_u32 v30, v32, 3, v30")
    A("s_lshl_b32 s42, s39, 1")
    A("v_xor_b32 v31, s42, v31")
    for c in range(4):
        x = (c & 1) | ((c >> 1) << 2)
        A(f"v_xor_b32 v32, {x}, v31")
        A(f"v_lshl_add_u32 {vr(vB+c)}, v32, 5, v30")
    A("s_waitcnt vmcnt(0)")
    A("s_mov_b32 s48, 0x05040100")
    A("s_mov_b32 s49, 0x07060302")
    def Rr(e, o, q): return R + (e*2+o)*4 + q
    for ch in range(16):
        o, q, hi = ch >> 3, (ch & 7) >> 1, ch & 1
        sel = "s49" if hi else "s48"
        for m in range(6):
            A(f"v_perm_b32 {vr(50 + m)}, {vr(Rr(2*m+1, o, q))}, {vr(Rr(2*m, o, q))}, {sel}")
        for m in range(6):
            dst = T1 + 4*ch + m if m < 4 else T2 + 2*ch + (m-4)
            A(f"v_accvgpr_write_b32 {ar(dst)}, {vr(50+m)}")
    for r in range(ACC, ACC+144):
        A(f"v_mov_b32 {vr(r)}, 0")
    stamp(A, 3)
    A("s_barrier")
    def frag_reads(P, aA, boff):
        g = []
        for c in range(4):
            for hh in range(2):
                g.append([f"ds_read_b64_tr_b16 {ar(fB(P,c)+2*hh, 2)}, {vr(aB+c)} offset:{XS + boff + hh*1024}"])
        for a in range(9):
            g.append([f"ds_read_b128 {ar(fA(P,a), 4)}, {vr(aA)} offset:{a*2048}"])
        return g
    def mfmas(P):
        m = []
        for a in range(9):
            for c in range(4):
                m.append(f"v_mfma_f32_16x16x32_bf16 {vr(acc(a,c),4)}, {ar(fA(P,a),4)}, {ar(fB(P,c),4)}, {vr(acc(a,c),4)}")
        return m
    def set_addr(sbuf):
        g = [f"v_add_u32 {vr(aA0)}, {sbuf}, {vr(vA0)}", f"v_add_u32 {vr(aA1)}, {sbuf}, {vr(vA1)}"]
        for c in range(4):
            g.append(f"v_add_u32 {vr(aB+c)}, {sbuf}, {vr(vB+c)}")
        return g
    A("s_mov_b32 s50, 0")
    for i in set_addr("s50"): A(i)
    for g in frag_reads(0, aA0, 0):
        for i in g: A(i)
    A("s_mov_b32 s51, 0")
    A("s_mov_b32 s44, s43")
    A(f"s_mov_b32 s45, {3*128}")
    A(f"s_mov_b32 s46, {3*131072}")
    A.raw(".p2align 6")
    A.label("L_k1_loop")
    A("s_waitcnt lgkmcnt(0)")
    body = interleave(mfmas(0), frag_reads(1, aA1, 8192), 0, 26)
    for i in body: A(i)
    A(f"s_add_u32 s50, s50, {STG}")
    A(f"s_cmp_eq_u32 s50, {3*STG}")
    A("s_cselect_b32 s50, 0, s50")
    A("s_cmp_lt_u32 s51, 5")
    A("s_cselect_b32 s45, s45, 0x40000000")
    A("s_waitcnt vmcnt(13) lgkmcnt(0)")
    A("s_barrier")
    for i in set_addr("s50"): A(i)
    fr = frag_reads(0, aA0, 0)
    dm = dma_groups("s44", "s45", "s46")
    fill = []
    for i in range(max(len(fr), len(dm))):
        if i < len(fr): fill.append(fr[i])
        if i < len(dm): fill.append(dm[i])
    body = interleave(mfmas(1), fill, 0, 32)
    for i in body: A(i)
    A(f"s_add_u32 s44, s44, {STG}")
    A(f"s_sub_u32 s52, s44, {3*STG}")
    A(f"s_cmp_ge_u32 s44, {3*STG}")
    A("s_cselect_b32 s44, s52, s44")
    A("s_add_u32 s45, s45, 128")
    A("s_add_u32 s46, s46, 131072")
    A("s_add_u32 s51, s51, 1")
    A("s_cmp_lt_u32 s51, 8")
    A("s_cbranch_scc1 L_k1_loop")
    stamp(A, 4)
    A("s_mov_b32 s53, 0xbfb8aa3b")
    A(f"s_mul_i32 s42, s39, {32*HS}")
    A(f"s_mul_i32 s47, s38, {9*32}")
    A("s_add_u32 s42, s42, s47")
    A(f"s_add_u32 s42, s42, {HB}")
    A(f"s_movk_i32 s47, {HS}")
    A("v_mul_lo_u32 v30, v28, s47")
    A("v_lshl_add_u32 v30, v29, 3, v30")
    A("v_add_u32 v30, s42, v30")
    A("s_nop 7")
    for a in range(9):
        t = 32
        for cc in range(2):
            for r in range(4):
                A(f"v_mul_f32 {vr(t+cc*4+r)}, s53, {vr(acc(a,2+cc)+r)}")
        for x in range(8):
            A(f"v_exp_f32 {vr(t+x)}, {vr(t+x)}")
        for x in range(8):
            A(f"v_add_f32 {vr(t+x)}, 1.0, {vr(t+x)}")
        for x in range(8):
            A(f"v_rcp_f32 {vr(t+x)}, {vr(t+x)}")
        for cc in range(2):
            for r in range(4):
                A(f"v_mul_f32 {vr(t+cc*4+r)}, {vr(acc(a,cc)+r)}, {vr(t+cc*4+r)}")
        p = 48 + (a & 1)*4
        for cc in range(2):
            A(f"v_cvt_pk_bf16_f32 {vr(p+cc*2)}, {vr(t+cc*4)}, {vr(t+cc*4+1)}")
            A(f"v_cvt_pk_bf16_f32 {vr(p+cc*2+1)}, {vr(t+cc*4+2)}, {vr(t+cc*4+3)}")
        for cc in range(2):
            A(f"ds_write_b64 v30, {vr(p+cc*2,2)} offset:{cc*16*HS + a*32}")
    A(f"s_mul_i32 s42, s4, {16*HS}")
    A(f"s_add_u32 s42, s42, {HB}")
    A("v_lshlrev_b32 v31, 5, v28")
    A("v_add_u32 v31, s42, v31")
    A("v_lshl_add_u32 v32, v29, 3, v31")
    A("v_lshl_add_u32 v31, v29, 4, v31")
    A("s_waitcnt lgkmcnt(0)")
    A("s_barrier")
    stamp(A, 5)
    for ch in range(16):
        A(f"ds_read_b128 {ar(4*ch,4)}, v31 offset:{ch*HS}")
        A(f"ds_read_b64 {ar(64+2*ch,2)}, v32 offset:{ch*HS+64}")
    D = 64
    A("s_waitcnt lgkmcnt(0)")
    for ch in range(16):
        A(f"v_mfma_f32_16x16x32_bf16 {vr(D+4*ch,4)}, {ar(4*ch,4)}, {ar(T1+4*ch,4)}, 0")
    for ch in range(16):
        A(f"v_mfma_f32_16x16x16_bf16 {vr(D+4*ch,4)}, {ar(64+2*ch,2)}, {ar(T2+2*ch,2)}, {vr(D+4*ch,4)}")
    A("s_lshl_b32 s42, s35, 3")
    A("s_lshl_b32 s47, s4, 1")
    A("s_add_u32 s42, s42, s47")
    A("s_lshl_b32 s42, s42, 17")
    A("s_lshl_b32 s47, s34, 12")
    A("s_add_u32 s42, s42, s47")
    A("v_lshlrev_b32 v30, 10, v29")
    A("v_lshl_add_u32 v30, v28, 4, v30")
    A("v_add_u32 v30, s42, v30")
    A("s_mov_b32 s47, 131072")
    A("s_nop 7")
    PK = 128
    for r in range(4):
        for hh in range(2):
            t = 32
            for x in range(8):
                A(f"v_mul_f32 {vr(t+x)}, s53, {vr(D+4*(8*hh+x)+r)}")
            for x in range(8):
                A(f"v_exp_f32 {vr(t+x)}, {vr(t+x)}")
            for x in range(8):
                A(f"v_add_f32 {vr(t+x)}, 1.0, {vr(t+x)}")
            for x in range(8):
                A(f"v_rcp_f32 {vr(t+x)}, {vr(t+x)}")
            for x in range(8):
                A(f"v_mul_f32 {vr(t+x)}, {vr(D+4*(8*hh+x)+r)}, {vr(t+x)}")
            p = PK + (r*2+hh)*4
            for x in range(4):
                A(f"v_cvt_pk_bf16_f32 {vr(p+x)}, {vr(t+2*x)}, {vr(t+2*x+1)}")
            so = "s47" if hh else "0"
            A(f"buffer_store_dwordx4 {vr(p,4)}, v30, s[20:23], {so} offen offset:{r*256}")
    stamp(A, 6)
    stamps_out(A, 8, "s2", "s[30:31]", 0)
    A.label("L_k1_end")
    A("s_endpgm")

def gen_k2(A):
    NB = 5
    SS = 16384; STG = 32768
    ACC = 64
    def acc(a, c): return ACC + (a*4 + c)*4
    def fS(P, a): return P*32 + a*4
    def fW(P, c): return P*32 + 16 + c*4
    vSA = 1
    vWA = 5
    vS0 = 9
    vB = 10
    aS0 = 14
    aB = 15
    A.raw(".p2align 8")
    A.label("k2_kernel")
    A("s_cmp_ge_u32 s2, 256")
    A("s_cbranch_scc1 L_k2_end")
    if STAMPS:
        A("s_memrealtime s[60:61]")
        stamp(A, 1)
    A("s_load_dwordx4 s[24:27], s[0:1], 24")
    A("s_load_dwordx2 s[30:31], s[0:1], 48")
    A("s_and_b32 s32, s2, 7")
    A("s_lshr_b32 s33, s2, 3")
    A("s_lshr_b32 s34, s33, 3")
    A("s_lshl_b32 s35, s32, 2")
    A("s_add_u32 s34, s34, s35")
    A("s_and_b32 s35, s33, 3")
    A("s_lshr_b32 s40, s33, 2")
    A("s_and_b32 s40, s40, 1")
    A("s_lshr_b32 s36, s34, 4")
    A("s_and_b32 s37, s34, 15")
    A("v_lshrrev_b32 v26, 6, v0")
    A("v_and_b32 v27, 63, v0")
    A("s_nop 0")
    A("v_readfirstlane_b32 s4, v26")
    A("v_and_b32 v28, 15, v27")
    A("v_lshrrev_b32 v29, 4, v27")
    A("s_lshr_b32 s38, s4, 1")
    A("s_and_b32 s39, s4, 1")
    A("s_lshl_b32 s42, s34, 8")
    A("s_lshl_b32 s41, s40, 7")
    A("s_add_u32 s42, s42, s41")
    A("s_lshl_b32 s41, s39, 6")
    A("s_add_u32 s42, s42, s41")
    A("s_lshl_b32 s42, s42, 4")
    A("s_lshl_b32 s41, s38, 17")
    A("s_add_u32 s42, s42, s41")
    A("v_lshlrev_b32 v30, 4, v27")
    A(f"v_add_u32 {vr(vSA)}, s42, v30")
    for m in range(1, 4):
        A(f"v_add_u32 {vr(vSA+m)}, {m*262144}, {vr(vSA)}")
    A("s_lshl_b32 s42, s38, 2")
    A("v_or_b32 v30, s42, v29")
    A("v_lshlrev_b32 v30, 1, v30")
    A("v_xor_b32 v30, v30, v28")
    A("v_lshlrev_b32 v31, 4, v30")
    A("s_lshl_b32 s42, s4, 2")
    A("v_add_u32 v30, s42, v29")
    A("v_lshl_add_u32 v31, v30, 10, v31")
    A("s_lshl_b32 s42, s35, 8")
    A(f"v_add_u32 {vr(vWA)}, s42, v31")
    for m in range(1, 4):
        A(f"v_add_u32 {vr(vWA+m)}, {m*16384}, {vr(vWA)}")
    A("s_waitcnt lgkmcnt(0)")
    A("s_mov_b32 s8, s30")
    A("s_and_b32 s9, s31, 0xffff")
    A("s_mov_b32 s10, 8388608")
    A("s_mov_b32 s11, 0x20000")
    A("s_mov_b32 s12, s24")
    A("s_and_b32 s13, s25, 0xffff")
    A("s_mov_b32 s14, 524288")
    A("s_mov_b32 s15, 0x20000")
    A("s_mov_b32 s16, s26")
    A("s_and_b32 s17, s27, 0xffff")
    A("s_mov_b32 s18, 8192000")
    A("s_mov_b32 s19, 0x20000")
    A("s_lshl_b32 s43, s4, 10")
    def dma_groups(sbase, sx, sw):
        g = []
        for m in range(4):
            g.append([f"s_add_u32 m0, {sbase}, {SS + m*4096}", "s_nop 0",
                      f"buffer_load_dwordx4 {vr(vWA+m)}, s[12:15], {sw} offen lds"])
            g.append([f"s_add_u32 m0, {sbase}, {m*4096}", "s_nop 0",
                      f"buffer_load_dwordx4 {vr(vSA+m)}, s[8:11], {sx} offen lds"])
        return g
    for kc in range(NB):
        A(f"s_add_u32 s44, s43, {kc*STG}")
        A(f"s_mov_b32 s45, {kc*1048576}")
        A(f"s_mov_b32 s46, {kc*65536}")
        for g in dma_groups("s44", "s45", "s46"):
            for ins in g: A(ins)
    stamp(A, 2)
    A("v_lshlrev_b32 v30, 11, v29")
    A("v_lshl_add_u32 v30, v28, 4, v30")
    A("s_lshl_b32 s42, s38, 10")
    A(f"v_add_u32 {vr(vS0)}, s42, v30")
    A("v_lshrrev_b32 v30, 2, v28")
    A("v_and_b32 v31, 1, v29")
    A("v_lshlrev_b32 v31, 2, v31")
    A("v_or_b32 v31, v31, v30")
    A("v_lshl_add_u32 v30, v29, 3, v30")
    A("v_lshlrev_b32 v30, 8, v30")
    A("v_and_b32 v32, 3, v28")
    A("v_lshl_add_u32 v30, v32, 3, v30")
    A("s_lshl_b32 s42, s39, 2")
    A("v_xor_b32 v31, s42, v31")
    for c in range(4):
        A(f"v_xor_b32 v32, {c}, v31")
        A(f"v_lshl_add_u32 {vr(vB+c)}, v32, 5, v30")
    for r in range(ACC, ACC+64):
        A(f"v_mov_b32 {vr(r)}, 0")
    A(f"s_waitcnt vmcnt({(NB-1)*8})")
    A("s_barrier")
    stamp(A, 3)
    def frag_reads(P, ks):
        g = []
        for c in range(4):
            for hh in range(2):
                g.append([f"ds_read_b64_tr_b16 {ar(fW(P,c)+2*hh, 2)}, {vr(aB+c)} offset:{SS + ks*8192 + hh*1024}"])
            g.append([f"ds_read_b128 {ar(fS(P,c), 4)}, {vr(aS0)} offset:{ks*8192 + c*256}"])
        return g
    def mfmas(P):
        m = []
        for a in range(4):
            for c in range(4):
                m.append(f"v_mfma_f32_16x16x32_bf16 {vr(acc(a,c),4)}, {ar(fW(P,c),4)}, {ar(fS(P,a),4)}, {vr(acc(a,c),4)}")
        return m
    def set_addr(sbuf):
        g = [f"v_add_u32 {vr(aS0)}, {sbuf}, {vr(vS0)}"]
        for c in range(4):
            g.append(f"v_add_u32 {vr(aB+c)}, {sbuf}, {vr(vB+c)}")
        return g
    A("s_mov_b32 s50, 0")
    for i in set_addr("s50"): A(i)
    for g in frag_reads(0, 0):
        for i in g: A(i)
    A("s_mov_b32 s51, 0")
    A("s_mov_b32 s44, s43")
    A(f"s_mov_b32 s45, {NB*1048576}")
    A(f"s_mov_b32 s46, {NB*65536}")
    A.raw(".p2align 6")
    A.label("L_k2_loop")
    A("s_waitcnt lgkmcnt(0)")
    body = interleave(mfmas(0), frag_reads(1, 1), 0, 12)
    for i in body: A(i)
    A(f"s_add_u32 s50, s50, {STG}")
    A(f"s_cmp_eq_u32 s50, {NB*STG}")
    A("s_cselect_b32 s50, 0, s50")
    A(f"s_waitcnt vmcnt({(NB-2)*8}) lgkmcnt(0)")
    A("s_barrier")
    for i in set_addr("s50"): A(i)
    fr = frag_reads(0, 0)
    dm = dma_groups("s44", "s45", "s46")
    fill = fr + dm
    body = interleave(mfmas(1), fill, 0, 16)
    for i in body: A(i)
    A(f"s_add_u32 s44, s44, {STG}")
    A(f"s_sub_u32 s52, s44, {NB*STG}")
    A(f"s_cmp_ge_u32 s44, {NB*STG}")
    A("s_cselect_b32 s44, s52, s44")
    A("s_add_u32 s45, s45, 1048576")
    A("s_add_u32 s46, s46, 65536")
    A("s_add_u32 s51, s51, 1")
    A("s_cmp_lt_u32 s51, 8")
    A("s_cbranch_scc1 L_k2_loop")
    stamp(A, 4)
    A("s_lshl_b32 s42, s40, 7")
    A("s_lshl_b32 s41, s38, 6")
    A("s_add_u32 s42, s42, s41")
    A("v_add_u32 v30, s42, v28")
    A("s_mul_i32 s41, s36, 4000")
    A("s_mul_i32 s47, s37, 250")
    A("s_add_u32 s41, s41, s47")
    A("v_and_b32 v31, 1, v29")
    A("v_lshlrev_b32 v31, 5, v31")
    A("v_lshrrev_b32 v32, 1, v29")
    A("v_lshl_add_u32 v31, v32, 4, v31")
    A("s_lshl_b32 s47, s35, 8")
    A("s_lshl_b32 s48, s39, 7")
    A("s_add_u32 s47, s47, s48")
    A("v_add_u32 v31, s47, v31")
    A("v_mov_b32 v34, 0x80000000")
    A("s_movk_i32 s48, 250")
    for a in range(4):
        A(f"v_add_u32 v32, {16*a}, v30")
        A("v_cmp_gt_u32 vcc, s48, v32")
        A("v_add_u32 v32, s41, v32")
        A("v_lshl_add_u32 v32, v32, 10, v31")
        A(f"v_cndmask_b32 {vr(36+a)}, v34, v32, vcc")
    PK = 128
    for a in range(4):
        for pr in range(2):
            p = PK + (a*2+pr)*4
            for t in range(2):
                d = acc(a, 2*pr+t)
                A(f"v_cvt_pk_bf16_f32 {vr(p+2*t)}, {vr(d)}, {vr(d+1)}")
                A(f"v_cvt_pk_bf16_f32 {vr(p+2*t+1)}, {vr(d+2)}, {vr(d+3)}")
            A("s_nop 1")
            A(f"v_permlane16_swap_b32 {vr(p)}, {vr(p+2)}")
            A(f"v_permlane16_swap_b32 {vr(p+1)}, {vr(p+3)}")
            A(f"buffer_store_dwordx4 {vr(p,4)}, {vr(36+a)}, s[16:19], 0 offen offset:{64*pr}")
    stamp(A, 5)
    stamp(A, 6)
    stamps_out(A, 8, "s2", "s[30:31]", 1)
    A.label("L_k2_end")
    A("s_endpgm")

def kd(name, vgpr, accum, sgpr=96):
    return f""".amdhsa_kernel {name}
  .amdhsa_next_free_vgpr {vgpr}
  .amdhsa_next_free_sgpr {sgpr}
  .amdhsa_accum_offset {accum}
  .amdhsa_group_segment_fixed_size 0
  .amdhsa_kernarg_size 56
  .amdhsa_user_sgpr_count 2
  .amdhsa_user_sgpr_kernarg_segment_ptr 1
  .amdhsa_system_sgpr_workgroup_id_x 1
.end_amdhsa_kernel
"""

A = Asm()
A.raw("; @launch kernel=k1_kernel grid=(256,1,1) block=(256,1,1) lds=159744")
A.raw("; @launch kernel=k2_kernel grid=(256,1,1) block=(256,1,1) lds=163840")
A.raw('.amdgcn_target "amdgcn-amd-amdhsa--gfx950"')
A.raw(".text")
A.raw(".globl k1_kernel\n.type k1_kernel,@function")
gen_k1(A)
A.raw(".globl k2_kernel\n.type k2_kernel,@function")
gen_k2(A)
A.raw('.section .rodata,"a"')
A.raw(".p2align 6")
A.raw(kd("k1_kernel", 512, 256))
A.raw(".p2align 6")
A.raw(kd("k2_kernel", 512, 256))
open(sys.argv[1], "w").write(A.text())
```
